```python
import torch

def _softmax(x, axis=-1):
    return torch.softmax(x, dim=axis)
def _gelu(x):
    return torch.nn.functional.gelu(x, approximate="tanh")
def _silu(x):
    return torch.nn.functional.silu(x)
def _sigmoid(x):
    return torch.sigmoid(x)
def _layernorm(x, axis=-1, eps=1e-5):
    m = x.mean(dim=axis, keepdim=True)
    v = x.var(dim=axis, keepdim=True, unbiased=False)
    return (x - m) / torch.sqrt(v + eps)
def _scatter_add(tgt, idx, src, axis=0):
    return tgt.clone().index_add_(axis, idx, src)
def _segment_sum(src, seg, n):
    out = torch.zeros((n,) + src.shape[1:], dtype=src.dtype)
    return out.index_add_(0, seg, src)
def _pad(x, pw):
    flat = tuple(v for pair in reversed(pw) for v in pair)
    return torch.nn.functional.pad(x, flat)

kernel_name = 'parallel_sum__gqa_block_cached__geglu_ffn__decode'

def setup_inputs():

    _w = (lambda a: (lambda t: t.to(torch.bfloat16) if t.is_floating_point() else t)(torch.as_tensor(a)))
    def _A_setup():
        B, Sq, D = 2, 1, 448
        Hq, Hkv, Sk, Dh = 16, 8, 32768, 256
        assert Hq % Hkv == 0, (Hq, Hkv)
        return {
            "x": _w((lambda *s: torch.randn(*s, dtype=torch.bfloat16) * 0.05)(B, Sq, D)),
            "k_cache": _w((lambda *s: torch.randn(*s, dtype=torch.bfloat16) * 3.2)(B, Hkv, Sk, Dh)),
            "v_cache": _w((lambda *s: torch.randn(*s, dtype=torch.bfloat16) * 1.6)(B, Hkv, Sk, Dh)),
            "wq": _w((lambda *s: torch.randn(*s, dtype=torch.bfloat16) * 3.2)(D, Hq * Dh) * (D ** -0.5)),
            "wo": _w((lambda *s: torch.randn(*s, dtype=torch.bfloat16) * 1.6)(Hq * Dh, D) * ((Hq * Dh) ** -0.5)),
        }
    _A_in = _A_setup()

    def _B_setup():
        B, S, D, F = 2, 1, 448, 1792
        return {
            "x": _w((lambda *s: torch.randn(*s, dtype=torch.bfloat16) * 0.05)(B, S, D)),
            "w_gate": _w((lambda *s: torch.randn(*s, dtype=torch.bfloat16) * 0.05)(D, F)),
            "w_up": _w((lambda *s: torch.randn(*s, dtype=torch.bfloat16) * 0.05)(D, F)),
            "w_down": _w((lambda *s: torch.randn(*s, dtype=torch.bfloat16) * 0.05)(F, D)),
        }
    _B_in = _B_setup()

    return {
        "A_x": _A_in["x"],
        "A_k_cache": _A_in["k_cache"],
        "A_v_cache": _A_in["v_cache"],
        "A_wq": _A_in["wq"],
        "A_wo": _A_in["wo"],
        "B_x": _B_in["x"],
        "B_w_gate": _B_in["w_gate"],
        "B_w_up": _B_in["w_up"],
        "B_w_down": _B_in["w_down"],
    }

def reference(A_x, A_k_cache, A_v_cache, A_wq, A_wo, B_x, B_w_gate, B_w_up, B_w_down):
    def _A_ref(x, k_cache, v_cache, wq, wo):
        B, Sq, D = x.shape
        Hq, Dh = 16, 256
        Hkv = k_cache.shape[1]
        rep = Hq // Hkv
        q = (lambda x, *d: x.permute(*d))((x @ wq).reshape(B, Sq, Hq, Dh), 0, 2, 1, 3)
        k = (lambda x, n, axis: torch.repeat_interleave(x, n, dim=axis))(k_cache, rep, axis=1)
        v = (lambda x, n, axis: torch.repeat_interleave(x, n, dim=axis))(v_cache, rep, axis=1)
        scores = torch.einsum("bhqd,bhkd->bhqk", q, k) * (Dh ** -0.5)
        p = _softmax(scores, axis=-1)
        o = torch.einsum("bhqk,bhkd->bhqd", p, v)
        return (lambda x, *d: x.permute(*d))(o, 0, 2, 1, 3).reshape(B, Sq, Hq * Dh) @ wo

    def _B_ref(x, w_gate, w_up, w_down):
        return (_gelu(x @ w_gate) * (x @ w_up)) @ w_down

    x = A_x
    xn = _layernorm(x, axis=-1)
    return x + _A_ref(xn, A_k_cache, A_v_cache, A_wq, A_wo) + _B_ref(xn, B_w_gate, B_w_up, B_w_down)
```

```python
import sys

OUT = "parallel_sum__gqa_block_cached__geglu_ffn__decode.s"

PROJ = 0x0
PART = 0x10000
YP = 0x200000
WS_BYTES = 0x40000000

L = []
def e(s=""):
    L.append("    " + s if s and not s.endswith(":") else s)

def bf16r(dst, src, tmp):
    e(f"v_cvt_pk_bf16_f32 {tmp}, {src}, {src}")
    e(f"v_lshlrev_b32 {dst}, 16, {tmp}")

def srd(base, lo, hi, nbytes):
    e(f"s_mov_b32 s{base}, {lo}")
    e(f"s_and_b32 s{base+1}, {hi}, 0xffff")
    e(f"s_mov_b32 s{base+2}, {nbytes}")
    e(f"s_mov_b32 s{base+3}, 0x20000")

hdr = open("parallel_sum__gqa_block_cached__geglu_ffn__decode.s.ref").read().split("\n")
for line in hdr:
    if line.startswith("; Override") or line.startswith("; grid=") or "@launch" in line:
        continue
    if not line.startswith(";"):
        break
    L.append(line)

NA = 120
NB = 512
NC = 92
L.append(f"; @launch kernel=proj_kernel grid=({NA},1,1) block=(256,1,1) lds=20480")
L.append(f"; @launch kernel=attn_kernel grid=({NB},1,1) block=(256,1,1) lds=16640")
L.append(f"; @launch kernel=out_kernel grid=({NC},1,1) block=(256,1,1) lds=20992")
L.append('.amdgcn_target "amdgcn-amd-amdhsa--gfx950"')
L.append(".text")

def kstart(name):
    L.append(f".globl {name}")
    L.append(".p2align 8")
    L.append(f".type {name},@function")
    L.append(f"{name}:")

kstart("proj_kernel")
e(f"s_cmp_ge_u32 s2, {NA}")
e("s_cbranch_scc1 LA_end")
e("s_load_dwordx2 s[4:5], s[0:1], 0")
e("s_load_dwordx2 s[6:7], s[0:1], 24")
e("s_load_dwordx4 s[8:11], s[0:1], 48")
e("s_load_dwordx2 s[12:13], s[0:1], 88")
e("v_and_b32 v1, 63, v0")
e("v_lshrrev_b32 v2, 6, v0")
e("s_waitcnt lgkmcnt(0)")
e("s_mov_b32 s16, s6")
e("s_mov_b32 s17, s7")
e("s_mov_b32 s20, 8192")
e("s_mov_b32 s21, s2")
e("s_mov_b32 s18, 3670016")
e("s_sub_u32 s22, s2, 64")
e("s_cmp_ge_u32 s2, 64")
e("s_cselect_b32 s16, s8, s16")
e("s_cselect_b32 s17, s9, s17")
e("s_cselect_b32 s20, 3584, s20")
e("s_cselect_b32 s18, 1605632, s18")
e("s_cselect_b32 s21, s22, s21")
e("s_sub_u32 s22, s2, 92")
e("s_cmp_ge_u32 s2, 92")
e("s_cselect_b32 s16, s10, s16")
e("s_cselect_b32 s17, s11, s17")
e("s_cselect_b32 s21, s22, s21")
e("s_and_b32 s17, s17, 0xffff")
e("s_mov_b32 s19, 0x20000")
srd(24, "s4", "s5", 1792)
srd(28, "s12", "s13", WS_BYTES)
e("v_lshrrev_b32 v3, 3, v1")
e("v_and_b32 v4, 7, v1")
e("v_mul_u32_u24 v5, 112, v2")
e("v_add_u32 v5, v5, v3")
e("v_mul_lo_u32 v6, v5, s20")
e("s_lshl_b32 s22, s21, 7")
e("v_lshlrev_b32 v7, 4, v4")
e("v_add3_u32 v6, v6, v7, s22")
e("s_lshl_b32 s23, s20, 3")
e("s_mov_b32 s22, 0")
WA = 64
for i in range(14):
    e(f"buffer_load_dwordx4 v[{WA+4*i}:{WA+4*i+3}], v6, s[16:19], s22 offen")
    if i < 13:
        e("s_add_u32 s22, s22, s23")
e("v_lshlrev_b32 v8, 4, v1")
e("v_mov_b32 v9, 0x7fffff00")
e("v_cmp_gt_u32 vcc, 56, v1")
e("s_nop 1")
e("v_cndmask_b32 v8, v9, v8, vcc")
e("v_cndmask_b32 v10, 0, 1.0, vcc")
e("buffer_load_dwordx4 v[12:15], v8, s[24:27], 0 offen")
e("buffer_load_dwordx4 v[16:19], v8, s[24:27], 0 offen offset:896")
e("s_waitcnt vmcnt(0)")
for b in range(2):
    for i in range(4):
        e(f"v_lshlrev_b32 v{20+8*b+2*i}, 16, v{12+4*b+i}")
        e(f"v_and_b32 v{20+8*b+2*i+1}, 0xffff0000, v{12+4*b+i}")

def wave_sum(vr, sdst):
    for sh in (1, 2, 4, 8):
        e("s_nop 1")
        e(f"v_add_f32_dpp {vr}, {vr}, {vr} row_shr:{sh} row_mask:0xf bank_mask:0xf")
    e("s_nop 1")
    e(f"v_readlane_b32 s40, {vr}, 15")
    e(f"v_readlane_b32 s41, {vr}, 31")
    e(f"v_readlane_b32 s42, {vr}, 47")
    e(f"v_readlane_b32 s43, {vr}, 63")
    e("s_nop 1")
    e(f"v_mov_b32 {vr}, s40")
    e(f"v_add_f32 {vr}, s41, {vr}")
    e(f"v_add_f32 {vr}, s42, {vr}")
    e(f"v_add_f32 {vr}, s43, {vr}")

e("s_mov_b32 s44, 0x3b124925")
for b in range(2):
    base = 20 + 8 * b
    e(f"v_add_f32 v36, v{base}, v{base+1}")
    for i in range(2, 8):
        e(f"v_add_f32 v36, v36, v{base+i}")
    wave_sum("v36", None)
    e(f"v_mul_f32 v{40+b}, s44, v36")
    e("v_mov_b32 v36, 0")
    for i in range(8):
        e(f"v_sub_f32 v37, v{base+i}, v{40+b}")
        e("v_fmac_f32 v36, v37, v37")
    e("v_mul_f32 v36, v36, v10")
    wave_sum("v36", None)
    e("v_mul_f32 v36, s44, v36")
    bf16r("v36", "v36", "v37")
    e("v_add_f32 v36, 0x3727c5ac, v36")
    bf16r("v36", "v36", "v37")
    e("v_sqrt_f32 v36, v36")
    e("s_nop 0")
    bf16r("v36", "v36", "v37")
    e(f"v_rcp_f32 v{42+b}, v36")
    bf16r(f"v{40+b}", f"v{40+b}", "v37")
    for i in range(8):
        e(f"v_sub_f32 v{base+i}, v{base+i}, v{40+b}")
    for i in range(0, 8, 2):
        e(f"v_cvt_pk_bf16_f32 v37, v{base+i}, v{base+i+1}")
        e(f"v_lshlrev_b32 v{base+i}, 16, v37")
        e(f"v_and_b32 v{base+i+1}, 0xffff0000, v37")
    for i in range(8):
        e(f"v_mul_f32 v{base+i}, v{base+i}, v{42+b}")
    for i in range(0, 8, 2):
        e(f"v_cvt_pk_bf16_f32 v37, v{base+i}, v{base+i+1}")
        e(f"v_lshlrev_b32 v{base+i}, 16, v37")
        e(f"v_and_b32 v{base+i+1}, 0xffff0000, v37")
e("v_lshlrev_b32 v8, 6, v1")
for i in range(8):
    e(f"v_mov_b32 v36, v{20+i}")
    e(f"v_mov_b32 v37, v{28+i}")
    e(f"ds_write_b64 v8, v[36:37] offset:{8*i}")
    e("s_nop 0")
e("s_waitcnt lgkmcnt(0)")
e("s_barrier")
e("v_lshlrev_b32 v8, 3, v5")
XA = 128
for i in range(14):
    e(f"ds_read_b64 v[{XA+2*i}:{XA+2*i+1}], v8 offset:{64*i}")
for i in range(16):
    e(f"v_mov_b32 v{44+i}, 0")
e("s_waitcnt vmcnt(0) lgkmcnt(0)")
for i in range(14):
    for k in range(4):
        e(f"v_lshlrev_b32 v36, 16, v{WA+4*i+k}")
        e(f"v_and_b32 v37, 0xffff0000, v{WA+4*i+k}")
        for b in range(2):
            e(f"v_fmac_f32 v{44+8*b+2*k}, v{XA+2*i+b}, v36")
            e(f"v_fmac_f32 v{44+8*b+2*k+1}, v{XA+2*i+b}, v37")
e("v_lshlrev_b32 v8, 3, v2")
e("v_add_u32 v8, v8, v3")
e("v_lshlrev_b32 v8, 9, v8")
e("v_lshlrev_b32 v9, 5, v4")
e("v_add_u32 v8, v8, v9")
for b in range(2):
    e(f"ds_write_b128 v8, v[{44+8*b}:{44+8*b+3}] offset:{4096+256*b}")
    e(f"ds_write_b128 v8, v[{44+8*b+4}:{44+8*b+7}] offset:{4096+256*b+16}")
e("s_waitcnt lgkmcnt(0)")
e("s_barrier")
e("v_cmp_gt_u32 vcc, 128, v0")
e("s_and_saveexec_b64 s[34:35], vcc")
e("s_cbranch_execz LA_end")
e("v_lshlrev_b32 v8, 2, v0")
for s in range(32):
    e(f"ds_read_b32 v{64+s}, v8 offset:{4096+512*s}")
e("s_waitcnt lgkmcnt(0)")
for s in range(1, 32):
    e(f"v_add_f32 v64, v64, v{64+s}")
e("v_cvt_pk_bf16_f32 v64, v64, v64")
e("v_lshrrev_b32 v9, 6, v0")
e("v_mul_u32_u24 v9, 15360, v9")
e("v_and_b32 v11, 63, v0")
e("v_lshlrev_b32 v11, 1, v11")
e("s_lshl_b32 s22, s2, 7")
e("v_add3_u32 v9, v9, v11, s22")
e(f"buffer_store_short v64, v9, s[28:31], 0 offen offset:{PROJ}")
e("LA_end:")
e("s_endpgm")

kstart("attn_kernel")
Q = 0
K0, K1, V0, V1 = 32, 64, 96, 128
ACC = 160
S = 176
PB = 180
T0, T1, T2, T3 = 196, 197, 198, 199
MR0, MR1, LS0, LS1 = 200, 201, 202, 203
AL0, AL1, P0, P1 = 204, 205, 206, 207
VK, VV, VBP, VTID, VLANE = 208, 209, 210, 211, 212
MX0, MX1 = 213, 214
e(f"s_cmp_ge_u32 s2, {NB}")
e("s_cbranch_scc1 LB_end")
e("s_load_dwordx4 s[20:23], s[0:1], 8")
e("s_load_dwordx2 s[24:25], s[0:1], 88")
e(f"v_mov_b32 v{VTID}, v0")
e(f"v_and_b32 v{VLANE}, 63, v0")
e(f"v_lshrrev_b32 v{T0}, 6, v0")
e("s_nop 0")
e(f"v_readfirstlane_b32 s26, v{T0}")
e(f"v_and_b32 v{T0}, 15, v{VLANE}")
e(f"v_lshrrev_b32 v{T1}, 4, v{VLANE}")
e(f"v_lshlrev_b32 v{VK}, 9, v{T0}")
e(f"v_lshl_add_u32 v{VK}, v{T1}, 4, v{VK}")
e(f"v_lshlrev_b32 v{VV}, 4, v{VLANE}")
e(f"v_lshrrev_b32 v{VBP}, 5, v{VLANE}")
e(f"v_lshlrev_b32 v{VBP}, 2, v{VBP}")
e("s_lshr_b32 s27, s2, 5")
e("s_and_b32 s28, s2, 31")
e("s_lshl_b32 s16, s27, 24")
e("s_lshl_b32 s29, s28, 19")
e("s_add_u32 s16, s16, s29")
e("s_lshl_b32 s29, s26, 17")
e("s_add_u32 s16, s16, s29")
e("s_add_u32 s18, s16, 4096")
e("s_mov_b32 s19, 0x3db8aa3b")
e("s_waitcnt lgkmcnt(0)")
srd(4, "s20", "s21", 0x10000000)
srd(8, "s22", "s23", 0x10000000)
srd(12, "s24", "s25", WS_BYTES)
e("s_lshr_b32 s29, s27, 3")
e("s_mul_i32 s29, s29, 15360")
e("s_and_b32 s30, s27, 7")
e("s_lshl_b32 s30, s30, 10")
e("s_add_u32 s29, s29, s30")
e(f"v_mov_b32 v{T2}, 0x7fffff00")
e(f"v_cmp_gt_u32 vcc, 2, v{T0}")
e("s_nop 1")
e(f"v_cndmask_b32 v{T2}, v{T2}, v{VK}, vcc")
for j in range(8):
    e(f"buffer_load_dwordx4 v[{Q+4*j}:{Q+4*j+3}], v{T2}, s[12:15], s29 offen offset:{PROJ+64*j}")

def issue(Kb, Vb):
    for j in range(8):
        e(f"buffer_load_dwordx4 v[{Kb+4*j}:{Kb+4*j+3}], v{VK}, s[4:7], s16 offen offset:{64*j}")
    for j in range(4):
        e(f"buffer_load_dwordx4 v[{Vb+4*j}:{Vb+4*j+3}], v{VV}, s[8:11], s16 offen offset:{1024*j}")
    for j in range(4, 8):
        e(f"buffer_load_dwordx4 v[{Vb+4*j}:{Vb+4*j+3}], v{VV}, s[8:11], s18 offen offset:{1024*(j-4)}")
    e("s_add_u32 s16, s16, 8192")
    e("s_add_u32 s18, s18, 8192")

issue(K0, V0)
for i in range(16):
    e(f"v_mov_b32 v{ACC+i}, 0")
e(f"v_mov_b32 v{MR0}, 0xff800000")
e(f"v_mov_b32 v{MR1}, 0xff800000")
e(f"v_mov_b32 v{LS0}, 0")
e(f"v_mov_b32 v{LS1}, 0")

def tile(Kc, Vc, Kn, Vn, prefetch):
    if prefetch:
        issue(Kn, Vn)
        e("s_waitcnt vmcnt(24)")
    else:
        e("s_waitcnt vmcnt(8)")
    for j in range(8):
        c = "0" if j == 0 else f"v[{S}:{S+3}]"
        e(f"v_mfma_f32_16x16x32_bf16 v[{S}:{S+3}], v[{Q+4*j}:{Q+4*j+3}], v[{Kc+4*j}:{Kc+4*j+3}], {c}")
    e("s_nop 7")
    e(f"v_cvt_pk_bf16_f32 v{T0}, v{S}, v{S+1}")
    e(f"v_lshlrev_b32 v{S}, 16, v{T0}")
    e(f"v_and_b32 v{S+1}, 0xffff0000, v{T0}")
    e(f"v_mul_f32 v{S}, s19, v{S}")
    e(f"v_mul_f32 v{S+1}, s19, v{S+1}")
    e(f"v_mov_b32 v{MX0}, v{S}")
    e(f"v_mov_b32 v{MX1}, v{S+1}")
    for sh in (1, 2, 4, 8):
        e("s_nop 0")
        e(f"v_max_f32_dpp v{MX0}, v{MX0}, v{MX0} row_shr:{sh} row_mask:0xf bank_mask:0xf")
        e(f"v_max_f32_dpp v{MX1}, v{MX1}, v{MX1} row_shr:{sh} row_mask:0xf bank_mask:0xf")
    e("s_nop 0")
    e(f"v_readlane_b32 s30, v{MX0}, 15")
    e(f"v_readlane_b32 s31, v{MX1}, 15")
    e("s_nop 1")
    e(f"v_max_f32 v{MX0}, s30, v{MR0}")
    e(f"v_max_f32 v{MX1}, s31, v{MR1}")
    e(f"v_sub_f32 v{AL0}, v{MR0}, v{MX0}")
    e(f"v_sub_f32 v{AL1}, v{MR1}, v{MX1}")
    e(f"v_sub_f32 v{P0}, v{S}, v{MX0}")
    e(f"v_sub_f32 v{P1}, v{S+1}, v{MX1}")
    e(f"v_exp_f32 v{AL0}, v{AL0}")
    e(f"v_exp_f32 v{AL1}, v{AL1}")
    e(f"v_exp_f32 v{P0}, v{P0}")
    e(f"v_exp_f32 v{P1}, v{P1}")
    e(f"v_mov_b32 v{MR0}, v{MX0}")
    e(f"v_mov_b32 v{MR1}, v{MX1}")
    for j in range(8):
        e(f"ds_bpermute_b32 v{PB+2*j}, v{VBP}, v{P0} offset:{8*j}")
        e(f"ds_bpermute_b32 v{PB+2*j+1}, v{VBP}, v{P1} offset:{8*j}")
    e(f"v_fma_f32 v{LS0}, v{LS0}, v{AL0}, v{P0}")
    e(f"v_fma_f32 v{LS1}, v{LS1}, v{AL1}, v{P1}")
    for i in range(8):
        e(f"v_mul_f32 v{ACC+i}, v{AL0}, v{ACC+i}")
        e(f"v_mul_f32 v{ACC+8+i}, v{AL1}, v{ACC+8+i}")
    if prefetch:
        e("s_waitcnt vmcnt(16) lgkmcnt(0)")
    else:
        e("s_waitcnt vmcnt(0) lgkmcnt(0)")
    for j in range(8):
        for k in range(4):
            e(f"v_lshlrev_b32 v{T0}, 16, v{Vc+4*j+k}")
            e(f"v_and_b32 v{T1}, 0xffff0000, v{Vc+4*j+k}")
            e(f"v_fmac_f32 v{ACC+2*k}, v{PB+2*j}, v{T0}")
            e(f"v_fmac_f32 v{ACC+2*k+1}, v{PB+2*j}, v{T1}")
            e(f"v_fmac_f32 v{ACC+8+2*k}, v{PB+2*j+1}, v{T0}")
            e(f"v_fmac_f32 v{ACC+8+2*k+1}, v{PB+2*j+1}, v{T1}")

e("s_mov_b32 s17, 0")
e("LB_loop:")
tile(K0, V0, K1, V1, True)
tile(K1, V1, K0, V0, True)
e("s_add_u32 s17, s17, 1")
e("s_cmp_lt_u32 s17, 7")
e("s_cbranch_scc1 LB_loop")
tile(K0, V0, K1, V1, True)
tile(K1, V1, K0, V0, False)
for sh in (1, 2, 4, 8):
    e("s_nop 0")
    e(f"v_add_f32_dpp v{LS0}, v{LS0}, v{LS0} row_shr:{sh} row_mask:0xf bank_mask:0xf")
    e(f"v_add_f32_dpp v{LS1}, v{LS1}, v{LS1} row_shr:{sh} row_mask:0xf bank_mask:0xf")
e(f"v_lshrrev_b32 v{T0}, 5, v{VTID}")
e(f"v_lshlrev_b32 v{T0}, 11, v{T0}")
e(f"v_and_b32 v{T1}, 31, v{VTID}")
e(f"v_lshl_add_u32 v{T0}, v{T1}, 5, v{T0}")
for h in range(2):
    e(f"ds_write_b128 v{T0}, v[{ACC+8*h}:{ACC+8*h+3}] offset:{1024*h}")
    e(f"ds_write_b128 v{T0}, v[{ACC+8*h+4}:{ACC+8*h+7}] offset:{1024*h+16}")
e(f"v_mov_b32 v{PB}, v{MR0}")
e(f"v_mov_b32 v{PB+1}, v{LS0}")
e(f"v_mov_b32 v{PB+2}, v{MR1}")
e(f"v_mov_b32 v{PB+3}, v{LS1}")
e(f"v_cmp_eq_u32 vcc, 15, v{VLANE}")
e("s_and_saveexec_b64 s[34:35], vcc")
e("s_lshl_b32 s29, s26, 4")
e(f"v_mov_b32 v{T1}, s29")
e(f"ds_write_b128 v{T1}, v[{PB}:{PB+3}] offset:16384")
e("s_mov_b64 exec, s[34:35]")
e("s_waitcnt lgkmcnt(0)")
e("s_barrier")
e(f"v_mov_b32 v{T1}, 0")
for w in range(4):
    e(f"ds_read_b128 v[{32+4*w}:{32+4*w+3}], v{T1} offset:{16384+16*w}")
e(f"v_lshlrev_b32 v{T0}, 2, v{VTID}")
for w in range(4):
    for hf in range(2):
        for h in range(2):
            e(f"ds_read_b32 v{64+(w*2+hf)*2+h}, v{T0} offset:{((w*2+hf)*2+h)*1024}")
e("s_waitcnt lgkmcnt(0)")
for h in range(2):
    m = [32 + 4 * w + 2 * h for w in range(4)]
    e(f"v_max_f32 v{T2}, v{m[0]}, v{m[1]}")
    e(f"v_max3_f32 v{T2}, v{T2}, v{m[2]}, v{m[3]}")
    for w in range(4):
        e(f"v_sub_f32 v{m[w]}, v{m[w]}, v{T2}")
        e(f"v_exp_f32 v{m[w]}, v{m[w]}")
    e("s_nop 0")
    e(f"v_mul_f32 v{T3}, v{m[0]}, v{m[0]+1}")
    for w in range(1, 4):
        e(f"v_fmac_f32 v{T3}, v{m[w]}, v{m[w]+1}")
    e(f"v_mov_b32 v{96+2*h}, v{T2}")
    e(f"v_mov_b32 v{97+2*h}, v{T3}")
    e(f"v_add_f32 v{S+h}, v{64+h}, v{64+2+h}")
    e(f"v_mul_f32 v{S+h}, v{S+h}, v{m[0]}")
    for w in range(1, 4):
        e(f"v_add_f32 v{T2}, v{64+(w*2)*2+h}, v{64+(w*2+1)*2+h}")
        e(f"v_fmac_f32 v{S+h}, v{T2}, v{m[w]}")
e("s_mul_i32 s29, s2, 2112")
e(f"s_add_u32 s29, s29, {PART}")
e(f"buffer_store_dword v{S}, v{T0}, s[12:15], s29 offen")
e(f"buffer_store_dword v{S+1}, v{T0}, s[12:15], s29 offen offset:1056")
e(f"v_cmp_eq_u32 vcc, 0, v{VTID}")
e("s_and_saveexec_b64 s[34:35], vcc")
e(f"buffer_store_dwordx2 v[96:97], v{T0}, s[12:15], s29 offen offset:1024")
e(f"buffer_store_dwordx2 v[98:99], v{T0}, s[12:15], s29 offen offset:2080")
e("LB_end:")
e("s_endpgm")

kstart("out_kernel")
e(f"s_cmp_ge_u32 s2, {NC}")
e("s_cbranch_scc1 LC_end")
e("s_load_dwordx2 s[4:5], s[0:1], 0")
e("s_load_dwordx2 s[6:7], s[0:1], 32")
e("s_load_dwordx4 s[8:11], s[0:1], 64")
e("s_load_dwordx4 s[12:15], s[0:1], 80")
e("v_and_b32 v1, 63, v0")
e("v_lshrrev_b32 v2, 6, v0")
e("s_nop 0")
e("v_readfirstlane_b32 s3, v2")
e("s_waitcnt lgkmcnt(0)")
e("s_mov_b32 s16, s6")
e("s_mov_b32 s17, s7")
e("s_mov_b32 s18, 3670016")
e("s_mov_b32 s20, s2")
e("s_sub_u32 s21, s2, 64")
e("s_cmp_ge_u32 s2, 64")
e("s_cselect_b32 s16, s8, s16")
e("s_cselect_b32 s17, s9, s17")
e("s_cselect_b32 s18, 1605632, s18")
e("s_cselect_b32 s20, s21, s20")
e("s_and_b32 s17, s17, 0xffff")
e("s_mov_b32 s19, 0x20000")
srd(24, "s4", "s5", 1792)
srd(28, "s14", "s15", WS_BYTES)
srd(32, "s10", "s11", 1792)
srd(36, "s12", "s13", 256)
e("s_lshl_b32 s21, s20, 6")
e("s_lshl_b32 s22, s3, 4")
e("s_add_u32 s21, s21, s22")
e("s_mul_i32 s21, s21, 896")
e("v_lshlrev_b32 v3, 4, v1")
e("v_mov_b32 v4, 0x7fffff00")
e("v_cmp_gt_u32 vcc, 56, v1")
e("s_nop 1")
e("v_cndmask_b32 v3, v4, v3, vcc")
WC = 64
for i in range(16):
    e(f"buffer_load_dwordx4 v[{WC+4*i}:{WC+4*i+3}], v3, s[16:19], s21 offen")
    if i < 15:
        e("s_add_u32 s21, s21, 896")
e("s_cmp_ge_u32 s2, 64")
e("s_cbranch_scc1 LC_ffn")
e("s_lshr_b32 s22, s2, 2")
e("s_and_b32 s23, s2, 3")
e("s_lshr_b32 s40, s22, 1")
e("s_and_b32 s41, s22, 1")
e("s_lshl_b32 s42, s40, 6")
e("s_add_u32 s42, s42, s41")
e("s_mul_i32 s42, s42, 1056")
e(f"s_add_u32 s42, s42, {PART}")
e(f"s_add_u32 s43, s42, {8*64*1056}")
e("v_and_b32 v5, 31, v1")
e("v_mul_u32_u24 v5, 2112, v5")
e("buffer_load_dwordx2 v[8:9], v5, s[28:31], s42 offen offset:1024")
e("buffer_load_dwordx2 v[10:11], v5, s[28:31], s43 offen offset:1024")
e("s_mul_i32 s44, s3, 16896")
e("s_lshl_b32 s45, s23, 8")
e("s_add_u32 s44, s44, s45")
e("v_lshlrev_b32 v6, 2, v1")
e("v_add_u32 v6, s44, v6")
for b in range(2):
    for k in range(8):
        so = "s42" if b == 0 else "s43"
        if k < 2:
            e(f"buffer_load_dword v{16+8*b+k}, v6, s[28:31], {so} offen offset:{2112*k}")
        else:
            pass
e("v_add_u32 v7, 4224, v6")
e("v_add_u32 v12, 8448, v6")
e("v_add_u32 v13, 12672, v6")
for b in range(2):
    so = "s42" if b == 0 else "s43"
    for k in range(2, 8):
        vo = ["v6", "v7", "v12", "v13"][k // 2]
        e(f"buffer_load_dword v{16+8*b+k}, {vo}, s[28:31], {so} offen offset:{2112*(k%2)}")
e("s_waitcnt vmcnt(16)")
for b in range(2):
    m, l = 8 + 2 * b, 9 + 2 * b
    e(f"v_mov_b32 v32, v{m}")
    for off in (0x041F, 0x081F, 0x101F, 0x201F, 0x401F):
        e(f"ds_swizzle_b32 v33, v32 offset:{off}")
        e("s_waitcnt lgkmcnt(0)")
        e("v_max_f32 v32, v32, v33")
    e(f"v_sub_f32 v{m}, v{m}, v32")
    e(f"v_exp_f32 v{m}, v{m}")
    e("s_nop 0")
    e(f"v_mul_f32 v{l}, v{m}, v{l}")
    for off in (0x041F, 0x081F, 0x101F, 0x201F, 0x401F):
        e(f"ds_swizzle_b32 v33, v{l} offset:{off}")
        e("s_waitcnt lgkmcnt(0)")
        e(f"v_add_f32 v{l}, v{l}, v33")
    e(f"v_rcp_f32 v{l}, v{l}")
e("s_lshl_b32 s46, s3, 3")
e("s_waitcnt vmcnt(0)" if False else "s_waitcnt vmcnt(0)")
for b in range(2):
    m = 8 + 2 * b
    e(f"v_mov_b32 v{34+b}, 0")
    for k in range(8):
        e(f"s_add_u32 s47, s46, {k}")
        e("s_nop 0")
        e(f"v_readlane_b32 s48, v{m}, s47")
        e("s_nop 1")
        e(f"v_fmac_f32 v{34+b}, s48, v{16+8*b+k}")
e("v_lshlrev_b32 v5, 2, v1")
e("s_lshl_b32 s47, s3, 9")
e("v_add_u32 v5, s47, v5")
e("ds_write_b32 v5, v34 offset:1024")
e("ds_write_b32 v5, v35 offset:1280")
e("s_waitcnt lgkmcnt(0)")
e("s_barrier")
e("v_cmp_gt_u32 vcc, 128, v0")
e("s_and_saveexec_b64 s[50:51], vcc")
e("s_cbranch_execz LC_a1")
e("v_lshlrev_b32 v5, 2, v0")
for w in range(4):
    e(f"ds_read_b32 v{36+w}, v5 offset:{1024+512*w}")
e("s_waitcnt lgkmcnt(0)")
e("v_add_f32 v36, v36, v37")
e("v_add_f32 v38, v38, v39")
e("v_add_f32 v36, v36, v38")
e("v_cmp_gt_u32 vcc, 64, v0")
e("s_nop 1")
e("v_cndmask_b32 v37, v11, v9, vcc")
e("v_mul_f32 v36, v36, v37")
bf16r("v36", "v36", "v37")
e("v_and_b32 v5, 63, v0")
e("v_lshlrev_b32 v5, 3, v5")
e("v_lshrrev_b32 v37, 6, v0")
e("v_lshl_add_u32 v5, v37, 2, v5")
e("ds_write_b32 v5, v36")
e("LC_a1:")
e("s_mov_b64 exec, s[50:51]")
e("s_branch LC_gemv")
e("LC_ffn:")
e("v_cmp_gt_u32 vcc, 128, v0")
e("s_and_saveexec_b64 s[50:51], vcc")
e("s_cbranch_execz LC_f1")
e("v_lshrrev_b32 v37, 6, v0")
e("v_and_b32 v5, 63, v0")
e("v_mul_u32_u24 v6, 15360, v37")
e("v_lshl_add_u32 v6, v5, 1, v6")
e("s_lshl_b32 s22, s20, 7")
e(f"s_add_u32 s22, s22, {PROJ + 8192}")
e("buffer_load_ushort v8, v6, s[28:31], s22 offen")
e("buffer_load_ushort v9, v6, s[28:31], s22 offen offset:3584")
e("s_waitcnt vmcnt(0)")
e("v_lshlrev_b32 v8, 16, v8")
e("v_lshlrev_b32 v9, 16, v9")
e("v_mul_f32 v10, v8, v8")
e("v_mul_f32 v10, v10, v8")
e("v_mov_b32 v11, 0x3d372713")
e("v_fma_f32 v10, v10, v11, v8")
e("v_mul_f32 v10, 0x40135761, v10")
e("v_exp_f32 v10, v10")
e("s_nop 0")
e("v_add_f32 v10, 1.0, v10")
e("v_rcp_f32 v10, v10")
e("s_nop 0")
e("v_fma_f32 v10, v10, -2.0, 2.0")
e("v_mul_f32 v10, v10, v8")
e("v_mul_f32 v10, 0.5, v10")
bf16r("v10", "v10", "v11")
e("v_mul_f32 v10, v10, v9")
bf16r("v10", "v10", "v11")
e("v_lshlrev_b32 v5, 3, v5")
e("v_lshl_add_u32 v5, v37, 2, v5")
e("ds_write_b32 v5, v10")
e("LC_f1:")
e("s_mov_b64 exec, s[50:51]")
e("LC_gemv:")
e("s_waitcnt vmcnt(0) lgkmcnt(0)")
e("s_barrier")
e("s_lshl_b32 s22, s3, 7")
e("v_mov_b32 v5, s22")
for i in range(16):
    e(f"ds_read_b64 v[{128+2*i}:{128+2*i+1}], v5 offset:{8*i}")
for i in range(16):
    e(f"v_mov_b32 v{40+i}, 0")
e("s_waitcnt lgkmcnt(0)")
for i in range(16):
    for k in range(4):
        e(f"v_lshlrev_b32 v36, 16, v{WC+4*i+k}")
        e(f"v_and_b32 v37, 0xffff0000, v{WC+4*i+k}")
        for b in range(2):
            e(f"v_fmac_f32 v{40+8*b+2*k}, v{128+2*i+b}, v36")
            e(f"v_fmac_f32 v{40+8*b+2*k+1}, v{128+2*i+b}, v37")
e("s_mul_i32 s22, s3, 3584")
e("v_lshlrev_b32 v5, 5, v1")
e("v_add_u32 v5, s22, v5")
e("v_cmp_gt_u32 vcc, 56, v1")
e("s_and_saveexec_b64 s[50:51], vcc")
for b in range(2):
    e(f"ds_write_b128 v5, v[{40+8*b}:{40+8*b+3}] offset:{4096+1792*b}")
    e(f"ds_write_b128 v5, v[{40+8*b+4}:{40+8*b+7}] offset:{4096+1792*b+16}")
e("s_mov_b64 exec, s[50:51]")
e("s_waitcnt lgkmcnt(0)")
e("s_barrier")
e("v_lshlrev_b32 v5, 4, v0")
e("v_cmp_gt_u32 vcc, 224, v0")
e("s_and_saveexec_b64 s[50:51], vcc")
e("s_cbranch_execz LC_g1")
for w in range(4):
    e(f"ds_read_b128 v[{8+4*w}:{8+4*w+3}], v5 offset:{4096+3584*w}")
e("s_waitcnt lgkmcnt(0)")
for k in range(4):
    e(f"v_add_f32 v{8+k}, v{8+k}, v{12+k}")
    e(f"v_add_f32 v{16+k}, v{16+k}, v{20+k}")
    e(f"v_add_f32 v{8+k}, v{8+k}, v{16+k}")
e("s_mul_i32 s22, s2, 3584")
e(f"s_add_u32 s22, s22, {YP}")
e("buffer_store_dwordx4 v[8:11], v5, s[28:31], s22 offen sc1")
e("LC_g1:")
e("s_mov_b64 exec, s[50:51]")
e("s_waitcnt vmcnt(0)")
e("s_barrier")
e("v_cmp_eq_u32 vcc, 0, v0")
e("s_and_saveexec_b64 s[50:51], vcc")
e("s_cbranch_execz LC_c1")
e("v_mov_b32 v6, 1")
e("v_mov_b32 v7, 0")
e("buffer_atomic_add v6, v7, s[36:39], 0 offen sc0 sc1")
e("s_waitcnt vmcnt(0)")
e("ds_write_b32 v7, v6 offset:20480")
e("LC_c1:")
e("s_mov_b64 exec, s[50:51]")
e("s_waitcnt lgkmcnt(0)")
e("s_barrier")
e("v_mov_b32 v7, 0")
e("ds_read_b32 v6, v7 offset:20480")
e("s_waitcnt lgkmcnt(0)")
e("v_readfirstlane_b32 s22, v6")
e(f"s_cmp_lg_u32 s22, {NC-1}")
e("s_cbranch_scc1 LC_end")
e("v_cmp_gt_u32 vcc, 224, v0")
e("s_and_saveexec_b64 s[50:51], vcc")
e("s_cbranch_execz LC_end")
e("v_lshlrev_b32 v6, 3, v0")
e("buffer_load_dwordx2 v[40:41], v6, s[24:27], 0 offen")
for k in range(8):
    e(f"v_mov_b32 v{8+k}, 0")
e(f"s_mov_b32 s22, {YP}")
g = 0
while g < NC:
    n = min(16, (64 - g) if g < 64 else (NC - g))
    for i in range(n):
        e(f"buffer_load_dwordx4 v[{64+4*i}:{64+4*i+3}], v5, s[28:31], s22 offen sc1")
        e("s_add_u32 s22, s22, 3584")
    for i in range(n):
        e(f"s_waitcnt vmcnt({n-1-i})")
        dst = 8 if g < 64 else 12
        for k in range(4):
            e(f"v_add_f32 v{dst+k}, v{dst+k}, v{64+4*i+k}")
    g += n
e("v_lshlrev_b32 v44, 16, v40")
e("v_and_b32 v45, 0xffff0000, v40")
e("v_lshlrev_b32 v46, 16, v41")
e("v_and_b32 v47, 0xffff0000, v41")
for k in range(4):
    bf16r(f"v{8+k}", f"v{8+k}", "v48")
    bf16r(f"v{12+k}", f"v{12+k}", "v48")
    e(f"v_add_f32 v{8+k}, v{44+k}, v{8+k}")
    bf16r(f"v{8+k}", f"v{8+k}", "v48")
    e(f"v_add_f32 v{8+k}, v{8+k}, v{12+k}")
e("v_cvt_pk_bf16_f32 v48, v8, v9")
e("v_cvt_pk_bf16_f32 v49, v10, v11")
e("buffer_store_dwordx2 v[48:49], v6, s[32:35], 0 offen")
e("LC_end:")
e("s_endpgm")

L.append('.section .rodata,"a"')
for name, nv in (("proj_kernel", 160), ("attn_kernel", 216), ("out_kernel", 160)):
    L.append(".p2align 6")
    L.append(f".amdhsa_kernel {name}")
    L.append(f"  .amdhsa_next_free_vgpr {nv}")
    L.append("  .amdhsa_next_free_sgpr 64")
    L.append(f"  .amdhsa_accum_offset {nv}")
    L.append("  .amdhsa_group_segment_fixed_size 0")
    L.append("  .amdhsa_kernarg_size 96")
    L.append("  .amdhsa_user_sgpr_count 2")
    L.append("  .amdhsa_user_sgpr_kernarg_segment_ptr 1")
    L.append("  .amdhsa_system_sgpr_workgroup_id_x 1")
    L.append(".end_amdhsa_kernel")

open(OUT, "w").write("\n".join(L) + "\n")
print("wrote", OUT, len(L), "lines")
```

```python
import sys
NT = " nt" if "nt" in sys.argv else ""
if len(sys.argv)>1: pass

OUT = "parallel_sum__gqa_block_cached__geglu_ffn__decode.s"
for a in sys.argv:
    if a.startswith("out="): OUT = a[4:]

PROJ = 0x0
PART = 0x10000
YP = 0x200000
WS_BYTES = 0x40000000

L = []
def e(s=""):
    L.append("    " + s if s and not s.endswith(":") else s)

def bf16r(dst, src, tmp):
    e(f"v_cvt_pk_bf16_f32 {tmp}, {src}, {src}")
    e(f"v_lshlrev_b32 {dst}, 16, {tmp}")

def srd(base, lo, hi, nbytes):
    e(f"s_mov_b32 s{base}, {lo}")
    e(f"s_and_b32 s{base+1}, {hi}, 0xffff")
    e(f"s_mov_b32 s{base+2}, {nbytes}")
    e(f"s_mov_b32 s{base+3}, 0x20000")

hdr = open("parallel_sum__gqa_block_cached__geglu_ffn__decode.s.ref").read().split("\n")
for line in hdr:
    if line.startswith("; Override") or line.startswith("; grid=") or "@launch" in line:
        continue
    if not line.startswith(";"):
        break
    L.append(line)

NA = 120
NB = 512
NC = 92
L.append(f"; @launch kernel=proj_kernel grid=({NA},1,1) block=(256,1,1) lds=20480")
L.append(f"; @launch kernel=attn_kernel grid=({NB},1,1) block=(256,1,1) lds=16640")
L.append(f"; @launch kernel=out_kernel grid=({NC},1,1) block=(256,1,1) lds=20992")
L.append('.amdgcn_target "amdgcn-amd-amdhsa--gfx950"')
L.append(".text")

def kstart(name):
    L.append(f".globl {name}")
    L.append(".p2align 8")
    L.append(f".type {name},@function")
    L.append(f"{name}:")

kstart("proj_kernel")
e(f"s_cmp_ge_u32 s2, {NA}")
e("s_cbranch_scc1 LA_end")
e("s_load_dwordx2 s[4:5], s[0:1], 0")
e("s_load_dwordx2 s[6:7], s[0:1], 24")
e("s_load_dwordx4 s[8:11], s[0:1], 48")
e("s_load_dwordx2 s[12:13], s[0:1], 88")
e("v_and_b32 v1, 63, v0")
e("v_lshrrev_b32 v2, 6, v0")
e("s_waitcnt lgkmcnt(0)")
e("s_mov_b32 s16, s6")
e("s_mov_b32 s17, s7")
e("s_mov_b32 s20, 8192")
e("s_mov_b32 s21, s2")
e("s_mov_b32 s18, 3670016")
e("s_sub_u32 s22, s2, 64")
e("s_cmp_ge_u32 s2, 64")
e("s_cselect_b32 s16, s8, s16")
e("s_cselect_b32 s17, s9, s17")
e("s_cselect_b32 s20, 3584, s20")
e("s_cselect_b32 s18, 1605632, s18")
e("s_cselect_b32 s21, s22, s21")
e("s_sub_u32 s22, s2, 92")
e("s_cmp_ge_u32 s2, 92")
e("s_cselect_b32 s16, s10, s16")
e("s_cselect_b32 s17, s11, s17")
e("s_cselect_b32 s21, s22, s21")
e("s_and_b32 s17, s17, 0xffff")
e("s_mov_b32 s19, 0x20000")
srd(24, "s4", "s5", 1792)
srd(28, "s12", "s13", WS_BYTES)
e("v_lshrrev_b32 v3, 3, v1")
e("v_and_b32 v4, 7, v1")
e("v_mul_u32_u24 v5, 112, v2")
e("v_add_u32 v5, v5, v3")
e("v_mul_lo_u32 v6, v5, s20")
e("s_lshl_b32 s22, s21, 7")
e("v_lshlrev_b32 v7, 4, v4")
e("v_add3_u32 v6, v6, v7, s22")
e("s_lshl_b32 s23, s20, 3")
e("s_mov_b32 s22, 0")
WA = 64
for i in range(14):
    e(f"buffer_load_dwordx4 v[{WA+4*i}:{WA+4*i+3}], v6, s[16:19], s22 offen")
    if i < 13:
        e("s_add_u32 s22, s22, s23")
e("v_lshlrev_b32 v8, 4, v1")
e("v_mov_b32 v9, 0x7fffff00")
e("v_cmp_gt_u32 vcc, 56, v1")
e("s_nop 1")
e("v_cndmask_b32 v8, v9, v8, vcc")
e("v_cndmask_b32 v10, 0, 1.0, vcc")
e("buffer_load_dwordx4 v[12:15], v8, s[24:27], 0 offen")
e("buffer_load_dwordx4 v[16:19], v8, s[24:27], 0 offen offset:896")
e("s_waitcnt vmcnt(0)")
for b in range(2):
    for i in range(4):
        e(f"v_lshlrev_b32 v{20+8*b+2*i}, 16, v{12+4*b+i}")
        e(f"v_and_b32 v{20+8*b+2*i+1}, 0xffff0000, v{12+4*b+i}")

def wave_sum(vr, sdst):
    for sh in (1, 2, 4, 8):
        e("s_nop 1")
        e(f"v_add_f32_dpp {vr}, {vr}, {vr} row_shr:{sh} row_mask:0xf bank_mask:0xf")
    e("s_nop 1")
    e(f"v_readlane_b32 s40, {vr}, 15")
    e(f"v_readlane_b32 s41, {vr}, 31")
    e(f"v_readlane_b32 s42, {vr}, 47")
    e(f"v_readlane_b32 s43, {vr}, 63")
    e("s_nop 1")
    e(f"v_mov_b32 {vr}, s40")
    e(f"v_add_f32 {vr}, s41, {vr}")
    e(f"v_add_f32 {vr}, s42, {vr}")
    e(f"v_add_f32 {vr}, s43, {vr}")

e("s_mov_b32 s44, 0x3b124925")
for b in range(2):
    base = 20 + 8 * b
    e(f"v_add_f32 v36, v{base}, v{base+1}")
    for i in range(2, 8):
        e(f"v_add_f32 v36, v36, v{base+i}")
    wave_sum("v36", None)
    e(f"v_mul_f32 v{40+b}, s44, v36")
    e("v_mov_b32 v36, 0")
    for i in range(8):
        e(f"v_sub_f32 v37, v{base+i}, v{40+b}")
        e("v_fmac_f32 v36, v37, v37")
    e("v_mul_f32 v36, v36, v10")
    wave_sum("v36", None)
    e("v_mul_f32 v36, s44, v36")
    bf16r("v36", "v36", "v37")
    e("v_add_f32 v36, 0x3727c5ac, v36")
    bf16r("v36", "v36", "v37")
    e("v_sqrt_f32 v36, v36")
    e("s_nop 0")
    bf16r("v36", "v36", "v37")
    e(f"v_rcp_f32 v{42+b}, v36")
    bf16r(f"v{40+b}", f"v{40+b}", "v37")
    for i in range(8):
        e(f"v_sub_f32 v{base+i}, v{base+i}, v{40+b}")
    for i in range(0, 8, 2):
        e(f"v_cvt_pk_bf16_f32 v37, v{base+i}, v{base+i+1}")
        e(f"v_lshlrev_b32 v{base+i}, 16, v37")
        e(f"v_and_b32 v{base+i+1}, 0xffff0000, v37")
    for i in range(8):
        e(f"v_mul_f32 v{base+i}, v{base+i}, v{42+b}")
    for i in range(0, 8, 2):
        e(f"v_cvt_pk_bf16_f32 v37, v{base+i}, v{base+i+1}")
        e(f"v_lshlrev_b32 v{base+i}, 16, v37")
        e(f"v_and_b32 v{base+i+1}, 0xffff0000, v37")
e("v_lshlrev_b32 v8, 6, v1")
for i in range(8):
    e(f"v_mov_b32 v36, v{20+i}")
    e(f"v_mov_b32 v37, v{28+i}")
    e(f"ds_write_b64 v8, v[36:37] offset:{8*i}")
    e("s_nop 0")
e("s_waitcnt lgkmcnt(0)")
e("s_barrier")
e("v_lshlrev_b32 v8, 3, v5")
XA = 128
for i in range(14):
    e(f"ds_read_b64 v[{XA+2*i}:{XA+2*i+1}], v8 offset:{64*i}")
for i in range(16):
    e(f"v_mov_b32 v{44+i}, 0")
e("s_waitcnt vmcnt(0) lgkmcnt(0)")
for i in range(14):
    for k in range(4):
        e(f"v_lshlrev_b32 v36, 16, v{WA+4*i+k}")
        e(f"v_and_b32 v37, 0xffff0000, v{WA+4*i+k}")
        for b in range(2):
            e(f"v_fmac_f32 v{44+8*b+2*k}, v{XA+2*i+b}, v36")
            e(f"v_fmac_f32 v{44+8*b+2*k+1}, v{XA+2*i+b}, v37")
e("v_lshlrev_b32 v8, 3, v2")
e("v_add_u32 v8, v8, v3")
e("v_lshlrev_b32 v8, 9, v8")
e("v_lshlrev_b32 v9, 5, v4")
e("v_add_u32 v8, v8, v9")
for b in range(2):
    e(f"ds_write_b128 v8, v[{44+8*b}:{44+8*b+3}] offset:{4096+256*b}")
    e(f"ds_write_b128 v8, v[{44+8*b+4}:{44+8*b+7}] offset:{4096+256*b+16}")
e("s_waitcnt lgkmcnt(0)")
e("s_barrier")
e("v_cmp_gt_u32 vcc, 128, v0")
e("s_and_saveexec_b64 s[34:35], vcc")
e("s_cbranch_execz LA_end")
e("v_lshlrev_b32 v8, 2, v0")
for s in range(32):
    e(f"ds_read_b32 v{64+s}, v8 offset:{4096+512*s}")
e("s_waitcnt lgkmcnt(0)")
for s in range(1, 32):
    e(f"v_add_f32 v64, v64, v{64+s}")
e("v_cvt_pk_bf16_f32 v64, v64, v64")
e("v_lshrrev_b32 v9, 6, v0")
e("v_mul_u32_u24 v9, 15360, v9")
e("v_and_b32 v11, 63, v0")
e("v_lshlrev_b32 v11, 1, v11")
e("s_lshl_b32 s22, s2, 7")
e("v_add3_u32 v9, v9, v11, s22")
e(f"buffer_store_short v64, v9, s[28:31], 0 offen offset:{PROJ}")
e("LA_end:")
e("s_endpgm")

kstart("attn_kernel")
Q = 0
K0, K1, V0, V1 = 32, 64, 96, 128
ACC = 160
S = 176
PB = 180
T0, T1, T2, T3 = 196, 197, 198, 199
MR0, MR1, LS0, LS1 = 200, 201, 202, 203
AL0, AL1, P0, P1 = 204, 205, 206, 207
VK, VV, VBP, VTID, VLANE = 208, 209, 210, 211, 212
MX0, MX1 = 213, 214
e(f"s_cmp_ge_u32 s2, {NB}")
e("s_cbranch_scc1 LB_end")
e("s_load_dwordx4 s[20:23], s[0:1], 8")
e("s_load_dwordx2 s[24:25], s[0:1], 88")
e(f"v_mov_b32 v{VTID}, v0")
e(f"v_and_b32 v{VLANE}, 63, v0")
e(f"v_lshrrev_b32 v{T0}, 6, v0")
e("s_nop 0")
e(f"v_readfirstlane_b32 s26, v{T0}")
e(f"v_and_b32 v{T0}, 15, v{VLANE}")
e(f"v_lshrrev_b32 v{T1}, 4, v{VLANE}")
e(f"v_lshlrev_b32 v{VK}, 9, v{T0}")
e(f"v_lshl_add_u32 v{VK}, v{T1}, 4, v{VK}")
e(f"v_lshlrev_b32 v{VV}, 4, v{VLANE}")
e(f"v_lshrrev_b32 v{VBP}, 5, v{VLANE}")
e(f"v_lshlrev_b32 v{VBP}, 2, v{VBP}")
e("s_lshr_b32 s27, s2, 5")
e("s_and_b32 s28, s2, 31")
e("s_lshl_b32 s16, s27, 24")
e("s_lshl_b32 s29, s28, 19")
e("s_add_u32 s16, s16, s29")
e("s_lshl_b32 s29, s26, 17")
e("s_add_u32 s16, s16, s29")
e("s_add_u32 s18, s16, 4096")
e("s_mov_b32 s19, 0x3db8aa3b")
e("s_waitcnt lgkmcnt(0)")
srd(4, "s20", "s21", 0x10000000)
srd(8, "s22", "s23", 0x10000000)
srd(12, "s24", "s25", WS_BYTES)
e("s_lshr_b32 s29, s27, 3")
e("s_mul_i32 s29, s29, 15360")
e("s_and_b32 s30, s27, 7")
e("s_lshl_b32 s30, s30, 10")
e("s_add_u32 s29, s29, s30")
e(f"v_mov_b32 v{T2}, 0x7fffff00")
e(f"v_cmp_gt_u32 vcc, 2, v{T0}")
e("s_nop 1")
e(f"v_cndmask_b32 v{T2}, v{T2}, v{VK}, vcc")
for j in range(8):
    e(f"buffer_load_dwordx4 v[{Q+4*j}:{Q+4*j+3}], v{T2}, s[12:15], s29 offen offset:{PROJ+64*j}")

def issue(Kb, Vb):
    for j in range(8):
        e(f"buffer_load_dwordx4 v[{Kb+4*j}:{Kb+4*j+3}], v{VK}, s[4:7], s16 offen offset:{64*j}{NT}")
    for j in range(4):
        e(f"buffer_load_dwordx4 v[{Vb+4*j}:{Vb+4*j+3}], v{VV}, s[8:11], s16 offen offset:{1024*j}{NT}")
    for j in range(4, 8):
        e(f"buffer_load_dwordx4 v[{Vb+4*j}:{Vb+4*j+3}], v{VV}, s[8:11], s18 offen offset:{1024*(j-4)}{NT}")
    e("s_add_u32 s16, s16, 8192")
    e("s_add_u32 s18, s18, 8192")

issue(K0, V0)
for i in range(16):
    e(f"v_mov_b32 v{ACC+i}, 0")
e(f"v_mov_b32 v{MR0}, 0xff800000")
e(f"v_mov_b32 v{MR1}, 0xff800000")
e(f"v_mov_b32 v{LS0}, 0")
e(f"v_mov_b32 v{LS1}, 0")

def tile(Kc, Vc, Kn, Vn, prefetch):
    if prefetch:
        issue(Kn, Vn)
        e("s_waitcnt vmcnt(24)")
    else:
        e("s_waitcnt vmcnt(8)")
    for j in range(8):
        c = "0" if j == 0 else f"v[{S}:{S+3}]"
        e(f"v_mfma_f32_16x16x32_bf16 v[{S}:{S+3}], v[{Q+4*j}:{Q+4*j+3}], v[{Kc+4*j}:{Kc+4*j+3}], {c}")
    e("s_nop 7")
    e(f"v_cvt_pk_bf16_f32 v{T0}, v{S}, v{S+1}")
    e(f"v_lshlrev_b32 v{S}, 16, v{T0}")
    e(f"v_and_b32 v{S+1}, 0xffff0000, v{T0}")
    e(f"v_mul_f32 v{S}, s19, v{S}")
    e(f"v_mul_f32 v{S+1}, s19, v{S+1}")
    e(f"v_mov_b32 v{MX0}, v{S}")
    e(f"v_mov_b32 v{MX1}, v{S+1}")
    for sh in (1, 2, 4, 8):
        e("s_nop 0")
        e(f"v_max_f32_dpp v{MX0}, v{MX0}, v{MX0} row_shr:{sh} row_mask:0xf bank_mask:0xf")
        e(f"v_max_f32_dpp v{MX1}, v{MX1}, v{MX1} row_shr:{sh} row_mask:0xf bank_mask:0xf")
    e("s_nop 0")
    e(f"v_readlane_b32 s30, v{MX0}, 15")
    e(f"v_readlane_b32 s31, v{MX1}, 15")
    e("s_nop 1")
    e(f"v_max_f32 v{MX0}, s30, v{MR0}")
    e(f"v_max_f32 v{MX1}, s31, v{MR1}")
    e(f"v_sub_f32 v{AL0}, v{MR0}, v{MX0}")
    e(f"v_sub_f32 v{AL1}, v{MR1}, v{MX1}")
    e(f"v_sub_f32 v{P0}, v{S}, v{MX0}")
    e(f"v_sub_f32 v{P1}, v{S+1}, v{MX1}")
    e(f"v_exp_f32 v{AL0}, v{AL0}")
    e(f"v_exp_f32 v{AL1}, v{AL1}")
    e(f"v_exp_f32 v{P0}, v{P0}")
    e(f"v_exp_f32 v{P1}, v{P1}")
    e(f"v_mov_b32 v{MR0}, v{MX0}")
    e(f"v_mov_b32 v{MR1}, v{MX1}")
    for j in range(8):
        e(f"ds_bpermute_b32 v{PB+2*j}, v{VBP}, v{P0} offset:{8*j}")
        e(f"ds_bpermute_b32 v{PB+2*j+1}, v{VBP}, v{P1} offset:{8*j}")
    e(f"v_fma_f32 v{LS0}, v{LS0}, v{AL0}, v{P0}")
    e(f"v_fma_f32 v{LS1}, v{LS1}, v{AL1}, v{P1}")
    for i in range(8):
        e(f"v_mul_f32 v{ACC+i}, v{AL0}, v{ACC+i}")
        e(f"v_mul_f32 v{ACC+8+i}, v{AL1}, v{ACC+8+i}")
    if prefetch:
        e("s_waitcnt vmcnt(16) lgkmcnt(0)")
    else:
        e("s_waitcnt vmcnt(0) lgkmcnt(0)")
    for j in range(8):
        for k in range(4):
            e(f"v_lshlrev_b32 v{T0}, 16, v{Vc+4*j+k}")
            e(f"v_and_b32 v{T1}, 0xffff0000, v{Vc+4*j+k}")
            e(f"v_fmac_f32 v{ACC+2*k}, v{PB+2*j}, v{T0}")
            e(f"v_fmac_f32 v{ACC+2*k+1}, v{PB+2*j}, v{T1}")
            e(f"v_fmac_f32 v{ACC+8+2*k}, v{PB+2*j+1}, v{T0}")
            e(f"v_fmac_f32 v{ACC+8+2*k+1}, v{PB+2*j+1}, v{T1}")

e("s_mov_b32 s17, 0")
e("LB_loop:")
tile(K0, V0, K1, V1, True)
tile(K1, V1, K0, V0, True)
e("s_add_u32 s17, s17, 1")
e("s_cmp_lt_u32 s17, 7")
e("s_cbranch_scc1 LB_loop")
tile(K0, V0, K1, V1, True)
tile(K1, V1, K0, V0, False)
for sh in (1, 2, 4, 8):
    e("s_nop 0")
    e(f"v_add_f32_dpp v{LS0}, v{LS0}, v{LS0} row_shr:{sh} row_mask:0xf bank_mask:0xf")
    e(f"v_add_f32_dpp v{LS1}, v{LS1}, v{LS1} row_shr:{sh} row_mask:0xf bank_mask:0xf")
e(f"v_lshrrev_b32 v{T0}, 5, v{VTID}")
e(f"v_lshlrev_b32 v{T0}, 11, v{T0}")
e(f"v_and_b32 v{T1}, 31, v{VTID}")
e(f"v_lshl_add_u32 v{T0}, v{T1}, 5, v{T0}")
for h in range(2):
    e(f"ds_write_b128 v{T0}, v[{ACC+8*h}:{ACC+8*h+3}] offset:{1024*h}")
    e(f"ds_write_b128 v{T0}, v[{ACC+8*h+4}:{ACC+8*h+7}] offset:{1024*h+16}")
e(f"v_mov_b32 v{PB}, v{MR0}")
e(f"v_mov_b32 v{PB+1}, v{LS0}")
e(f"v_mov_b32 v{PB+2}, v{MR1}")
e(f"v_mov_b32 v{PB+3}, v{LS1}")
e(f"v_cmp_eq_u32 vcc, 15, v{VLANE}")
e("s_and_saveexec_b64 s[34:35], vcc")
e("s_lshl_b32 s29, s26, 4")
e(f"v_mov_b32 v{T1}, s29")
e(f"ds_write_b128 v{T1}, v[{PB}:{PB+3}] offset:16384")
e("s_mov_b64 exec, s[34:35]")
e("s_waitcnt lgkmcnt(0)")
e("s_barrier")
e(f"v_mov_b32 v{T1}, 0")
for w in range(4):
    e(f"ds_read_b128 v[{32+4*w}:{32+4*w+3}], v{T1} offset:{16384+16*w}")
e(f"v_lshlrev_b32 v{T0}, 2, v{VTID}")
for w in range(4):
    for hf in range(2):
        for h in range(2):
            e(f"ds_read_b32 v{64+(w*2+hf)*2+h}, v{T0} offset:{((w*2+hf)*2+h)*1024}")
e("s_waitcnt lgkmcnt(0)")
for h in range(2):
    m = [32 + 4 * w + 2 * h for w in range(4)]
    e(f"v_max_f32 v{T2}, v{m[0]}, v{m[1]}")
    e(f"v_max3_f32 v{T2}, v{T2}, v{m[2]}, v{m[3]}")
    for w in range(4):
        e(f"v_sub_f32 v{m[w]}, v{m[w]}, v{T2}")
        e(f"v_exp_f32 v{m[w]}, v{m[w]}")
    e("s_nop 0")
    e(f"v_mul_f32 v{T3}, v{m[0]}, v{m[0]+1}")
    for w in range(1, 4):
        e(f"v_fmac_f32 v{T3}, v{m[w]}, v{m[w]+1}")
    e(f"v_mov_b32 v{96+2*h}, v{T2}")
    e(f"v_mov_b32 v{97+2*h}, v{T3}")
    e(f"v_add_f32 v{S+h}, v{64+h}, v{64+2+h}")
    e(f"v_mul_f32 v{S+h}, v{S+h}, v{m[0]}")
    for w in range(1, 4):
        e(f"v_add_f32 v{T2}, v{64+(w*2)*2+h}, v{64+(w*2+1)*2+h}")
        e(f"v_fmac_f32 v{S+h}, v{T2}, v{m[w]}")
e("s_mul_i32 s29, s2, 2112")
e(f"s_add_u32 s29, s29, {PART}")
e(f"buffer_store_dword v{S}, v{T0}, s[12:15], s29 offen")
e(f"buffer_store_dword v{S+1}, v{T0}, s[12:15], s29 offen offset:1056")
e(f"v_cmp_eq_u32 vcc, 0, v{VTID}")
e("s_and_saveexec_b64 s[34:35], vcc")
e(f"buffer_store_dwordx2 v[96:97], v{T0}, s[12:15], s29 offen offset:1024")
e(f"buffer_store_dwordx2 v[98:99], v{T0}, s[12:15], s29 offen offset:2080")
e("LB_end:")
e("s_endpgm")

kstart("out_kernel")
e(f"s_cmp_ge_u32 s2, {NC}")
e("s_cbranch_scc1 LC_end")
e("s_load_dwordx2 s[4:5], s[0:1], 0")
e("s_load_dwordx2 s[6:7], s[0:1], 32")
e("s_load_dwordx4 s[8:11], s[0:1], 64")
e("s_load_dwordx4 s[12:15], s[0:1], 80")
e("v_and_b32 v1, 63, v0")
e("v_lshrrev_b32 v2, 6, v0")
e("s_nop 0")
e("v_readfirstlane_b32 s3, v2")
e("s_waitcnt lgkmcnt(0)")
e("s_mov_b32 s16, s6")
e("s_mov_b32 s17, s7")
e("s_mov_b32 s18, 3670016")
e("s_mov_b32 s20, s2")
e("s_sub_u32 s21, s2, 64")
e("s_cmp_ge_u32 s2, 64")
e("s_cselect_b32 s16, s8, s16")
e("s_cselect_b32 s17, s9, s17")
e("s_cselect_b32 s18, 1605632, s18")
e("s_cselect_b32 s20, s21, s20")
e("s_and_b32 s17, s17, 0xffff")
e("s_mov_b32 s19, 0x20000")
srd(24, "s4", "s5", 1792)
srd(28, "s14", "s15", WS_BYTES)
srd(32, "s10", "s11", 1792)
srd(36, "s12", "s13", 256)
e("s_lshl_b32 s21, s20, 6")
e("s_lshl_b32 s22, s3, 4")
e("s_add_u32 s21, s21, s22")
e("s_mul_i32 s21, s21, 896")
e("v_lshlrev_b32 v3, 4, v1")
e("v_mov_b32 v4, 0x7fffff00")
e("v_cmp_gt_u32 vcc, 56, v1")
e("s_nop 1")
e("v_cndmask_b32 v3, v4, v3, vcc")
WC = 64
for i in range(16):
    e(f"buffer_load_dwordx4 v[{WC+4*i}:{WC+4*i+3}], v3, s[16:19], s21 offen")
    if i < 15:
        e("s_add_u32 s21, s21, 896")
e("s_cmp_ge_u32 s2, 64")
e("s_cbranch_scc1 LC_ffn")
e("s_lshr_b32 s22, s2, 2")
e("s_and_b32 s23, s2, 3")
e("s_lshr_b32 s40, s22, 1")
e("s_and_b32 s41, s22, 1")
e("s_lshl_b32 s42, s40, 6")
e("s_add_u32 s42, s42, s41")
e("s_mul_i32 s42, s42, 1056")
e(f"s_add_u32 s42, s42, {PART}")
e(f"s_add_u32 s43, s42, {8*64*1056}")
e("v_and_b32 v5, 31, v1")
e("v_mul_u32_u24 v5, 2112, v5")
e("buffer_load_dwordx2 v[8:9], v5, s[28:31], s42 offen offset:1024")
e("buffer_load_dwordx2 v[10:11], v5, s[28:31], s43 offen offset:1024")
e("s_mul_i32 s44, s3, 16896")
e("s_lshl_b32 s45, s23, 8")
e("s_add_u32 s44, s44, s45")
e("v_lshlrev_b32 v6, 2, v1")
e("v_add_u32 v6, s44, v6")
for b in range(2):
    for k in range(8):
        so = "s42" if b == 0 else "s43"
        if k < 2:
            e(f"buffer_load_dword v{16+8*b+k}, v6, s[28:31], {so} offen offset:{2112*k}")
        else:
            pass
e("v_add_u32 v7, 4224, v6")
e("v_add_u32 v12, 8448, v6")
e("v_add_u32 v13, 12672, v6")
for b in range(2):
    so = "s42" if b == 0 else "s43"
    for k in range(2, 8):
        vo = ["v6", "v7", "v12", "v13"][k // 2]
        e(f"buffer_load_dword v{16+8*b+k}, {vo}, s[28:31], {so} offen offset:{2112*(k%2)}")
e("s_waitcnt vmcnt(16)")
for b in range(2):
    m, l = 8 + 2 * b, 9 + 2 * b
    e(f"v_mov_b32 v32, v{m}")
    for off in (0x041F, 0x081F, 0x101F, 0x201F, 0x401F):
        e(f"ds_swizzle_b32 v33, v32 offset:{off}")
        e("s_waitcnt lgkmcnt(0)")
        e("v_max_f32 v32, v32, v33")
    e(f"v_sub_f32 v{m}, v{m}, v32")
    e(f"v_exp_f32 v{m}, v{m}")
    e("s_nop 0")
    e(f"v_mul_f32 v{l}, v{m}, v{l}")
    for off in (0x041F, 0x081F, 0x101F, 0x201F, 0x401F):
        e(f"ds_swizzle_b32 v33, v{l} offset:{off}")
        e("s_waitcnt lgkmcnt(0)")
        e(f"v_add_f32 v{l}, v{l}, v33")
    e(f"v_rcp_f32 v{l}, v{l}")
e("s_lshl_b32 s46, s3, 3")
e("s_waitcnt vmcnt(0)" if False else "s_waitcnt vmcnt(0)")
for b in range(2):
    m = 8 + 2 * b
    e(f"v_mov_b32 v{34+b}, 0")
    for k in range(8):
        e(f"s_add_u32 s47, s46, {k}")
        e("s_nop 0")
        e(f"v_readlane_b32 s48, v{m}, s47")
        e("s_nop 1")
        e(f"v_fmac_f32 v{34+b}, s48, v{16+8*b+k}")
e("v_lshlrev_b32 v5, 2, v1")
e("s_lshl_b32 s47, s3, 9")
e("v_add_u32 v5, s47, v5")
e("ds_write_b32 v5, v34 offset:1024")
e("ds_write_b32 v5, v35 offset:1280")
e("s_waitcnt lgkmcnt(0)")
e("s_barrier")
e("v_cmp_gt_u32 vcc, 128, v0")
e("s_and_saveexec_b64 s[50:51], vcc")
e("s_cbranch_execz LC_a1")
e("v_lshlrev_b32 v5, 2, v0")
for w in range(4):
    e(f"ds_read_b32 v{36+w}, v5 offset:{1024+512*w}")
e("s_waitcnt lgkmcnt(0)")
e("v_add_f32 v36, v36, v37")
e("v_add_f32 v38, v38, v39")
e("v_add_f32 v36, v36, v38")
e("v_cmp_gt_u32 vcc, 64, v0")
e("s_nop 1")
e("v_cndmask_b32 v37, v11, v9, vcc")
e("v_mul_f32 v36, v36, v37")
bf16r("v36", "v36", "v37")
e("v_and_b32 v5, 63, v0")
e("v_lshlrev_b32 v5, 3, v5")
e("v_lshrrev_b32 v37, 6, v0")
e("v_lshl_add_u32 v5, v37, 2, v5")
e("ds_write_b32 v5, v36")
e("LC_a1:")
e("s_mov_b64 exec, s[50:51]")
e("s_branch LC_gemv")
e("LC_ffn:")
e("v_cmp_gt_u32 vcc, 128, v0")
e("s_and_saveexec_b64 s[50:51], vcc")
e("s_cbranch_execz LC_f1")
e("v_lshrrev_b32 v37, 6, v0")
e("v_and_b32 v5, 63, v0")
e("v_mul_u32_u24 v6, 15360, v37")
e("v_lshl_add_u32 v6, v5, 1, v6")
e("s_lshl_b32 s22, s20, 7")
e(f"s_add_u32 s22, s22, {PROJ + 8192}")
e("buffer_load_ushort v8, v6, s[28:31], s22 offen")
e("buffer_load_ushort v9, v6, s[28:31], s22 offen offset:3584")
e("s_waitcnt vmcnt(0)")
e("v_lshlrev_b32 v8, 16, v8")
e("v_lshlrev_b32 v9, 16, v9")
e("v_mul_f32 v10, v8, v8")
e("v_mul_f32 v10, v10, v8")
e("v_mov_b32 v11, 0x3d372713")
e("v_fma_f32 v10, v10, v11, v8")
e("v_mul_f32 v10, 0x40135761, v10")
e("v_exp_f32 v10, v10")
e("s_nop 0")
e("v_add_f32 v10, 1.0, v10")
e("v_rcp_f32 v10, v10")
e("s_nop 0")
e("v_fma_f32 v10, v10, -2.0, 2.0")
e("v_mul_f32 v10, v10, v8")
e("v_mul_f32 v10, 0.5, v10")
bf16r("v10", "v10", "v11")
e("v_mul_f32 v10, v10, v9")
bf16r("v10", "v10", "v11")
e("v_lshlrev_b32 v5, 3, v5")
e("v_lshl_add_u32 v5, v37, 2, v5")
e("ds_write_b32 v5, v10")
e("LC_f1:")
e("s_mov_b64 exec, s[50:51]")
e("LC_gemv:")
e("s_waitcnt vmcnt(0) lgkmcnt(0)")
e("s_barrier")
e("s_lshl_b32 s22, s3, 7")
e("v_mov_b32 v5, s22")
for i in range(16):
    e(f"ds_read_b64 v[{128+2*i}:{128+2*i+1}], v5 offset:{8*i}")
for i in range(16):
    e(f"v_mov_b32 v{40+i}, 0")
e("s_waitcnt lgkmcnt(0)")
for i in range(16):
    for k in range(4):
        e(f"v_lshlrev_b32 v36, 16, v{WC+4*i+k}")
        e(f"v_and_b32 v37, 0xffff0000, v{WC+4*i+k}")
        for b in range(2):
            e(f"v_fmac_f32 v{40+8*b+2*k}, v{128+2*i+b}, v36")
            e(f"v_fmac_f32 v{40+8*b+2*k+1}, v{128+2*i+b}, v37")
e("s_mul_i32 s22, s3, 3584")
e("v_lshlrev_b32 v5, 5, v1")
e("v_add_u32 v5, s22, v5")
e("v_cmp_gt_u32 vcc, 56, v1")
e("s_and_saveexec_b64 s[50:51], vcc")
for b in range(2):
    e(f"ds_write_b128 v5, v[{40+8*b}:{40+8*b+3}] offset:{4096+1792*b}")
    e(f"ds_write_b128 v5, v[{40+8*b+4}:{40+8*b+7}] offset:{4096+1792*b+16}")
e("s_mov_b64 exec, s[50:51]")
e("s_waitcnt lgkmcnt(0)")
e("s_barrier")
e("v_lshlrev_b32 v5, 4, v0")
e("v_cmp_gt_u32 vcc, 224, v0")
e("s_and_saveexec_b64 s[50:51], vcc")
e("s_cbranch_execz LC_g1")
for w in range(4):
    e(f"ds_read_b128 v[{8+4*w}:{8+4*w+3}], v5 offset:{4096+3584*w}")
e("s_waitcnt lgkmcnt(0)")
for k in range(4):
    e(f"v_add_f32 v{8+k}, v{8+k}, v{12+k}")
    e(f"v_add_f32 v{16+k}, v{16+k}, v{20+k}")
    e(f"v_add_f32 v{8+k}, v{8+k}, v{16+k}")
e("s_mul_i32 s22, s2, 3584")
e(f"s_add_u32 s22, s22, {YP}")
e("buffer_store_dwordx4 v[8:11], v5, s[28:31], s22 offen sc1")
e("LC_g1:")
e("s_mov_b64 exec, s[50:51]")
e("s_waitcnt vmcnt(0)")
e("s_barrier")
e("v_cmp_eq_u32 vcc, 0, v0")
e("s_and_saveexec_b64 s[50:51], vcc")
e("s_cbranch_execz LC_c1")
e("v_mov_b32 v6, 1")
e("v_mov_b32 v7, 0")
e("buffer_atomic_add v6, v7, s[36:39], 0 offen sc0 sc1")
e("s_waitcnt vmcnt(0)")
e("ds_write_b32 v7, v6 offset:20480")
e("LC_c1:")
e("s_mov_b64 exec, s[50:51]")
e("s_waitcnt lgkmcnt(0)")
e("s_barrier")
e("v_mov_b32 v7, 0")
e("ds_read_b32 v6, v7 offset:20480")
e("s_waitcnt lgkmcnt(0)")
e("v_readfirstlane_b32 s22, v6")
e(f"s_cmp_lg_u32 s22, {NC-1}")
e("s_cbranch_scc1 LC_end")
e("v_cmp_gt_u32 vcc, 224, v0")
e("s_and_saveexec_b64 s[50:51], vcc")
e("s_cbranch_execz LC_end")
e("v_lshlrev_b32 v6, 3, v0")
e("buffer_load_dwordx2 v[40:41], v6, s[24:27], 0 offen")
for k in range(8):
    e(f"v_mov_b32 v{8+k}, 0")
e(f"s_mov_b32 s22, {YP}")
g = 0
while g < NC:
    n = min(32, (64 - g) if g < 64 else (NC - g))
    for i in range(n):
        e(f"buffer_load_dwordx4 v[{64+4*i}:{64+4*i+3}], v5, s[28:31], s22 offen sc1")
        e("s_add_u32 s22, s22, 3584")
    for i in range(n):
        e(f"s_waitcnt vmcnt({n-1-i})")
        dst = 8 if g < 64 else 12
        for k in range(4):
            e(f"v_add_f32 v{dst+k}, v{dst+k}, v{64+4*i+k}")
    g += n
e("v_lshlrev_b32 v44, 16, v40")
e("v_and_b32 v45, 0xffff0000, v40")
e("v_lshlrev_b32 v46, 16, v41")
e("v_and_b32 v47, 0xffff0000, v41")
for k in range(4):
    bf16r(f"v{8+k}", f"v{8+k}", "v48")
    bf16r(f"v{12+k}", f"v{12+k}", "v48")
    e(f"v_add_f32 v{8+k}, v{44+k}, v{8+k}")
    bf16r(f"v{8+k}", f"v{8+k}", "v48")
    e(f"v_add_f32 v{8+k}, v{8+k}, v{12+k}")
e("v_cvt_pk_bf16_f32 v48, v8, v9")
e("v_cvt_pk_bf16_f32 v49, v10, v11")
e("buffer_store_dwordx2 v[48:49], v6, s[32:35], 0 offen")
e("LC_end:")
e("s_endpgm")

L.append('.section .rodata,"a"')
for name, nv in (("proj_kernel", 160), ("attn_kernel", 216), ("out_kernel", 200)):
    L.append(".p2align 6")
    L.append(f".amdhsa_kernel {name}")
    L.append(f"  .amdhsa_next_free_vgpr {nv}")
    L.append("  .amdhsa_next_free_sgpr 64")
    L.append(f"  .amdhsa_accum_offset {nv}")
    L.append("  .amdhsa_group_segment_fixed_size 0")
    L.append("  .amdhsa_kernarg_size 96")
    L.append("  .amdhsa_user_sgpr_count 2")
    L.append("  .amdhsa_user_sgpr_kernarg_segment_ptr 1")
    L.append("  .amdhsa_system_sgpr_workgroup_id_x 1")
    L.append(".end_amdhsa_kernel")

open(OUT, "w").write("\n".join(L) + "\n")
print("wrote", OUT, len(L), "lines")
```
